```python
import torch

def _softmax(x, axis=-1):
    return torch.softmax(x, dim=axis)
def _gelu(x):
    return torch.nn.functional.gelu(x, approximate="tanh")
def _silu(x):
    return torch.nn.functional.silu(x)
def _sigmoid(x):
    return torch.sigmoid(x)
def _layernorm(x, axis=-1, eps=1e-5):
    m = x.mean(dim=axis, keepdim=True)
    v = x.var(dim=axis, keepdim=True, unbiased=False)
    return (x - m) / torch.sqrt(v + eps)
def _scatter_add(tgt, idx, src, axis=0):
    return tgt.clone().index_add_(axis, idx, src)
def _segment_sum(src, seg, n):
    out = torch.zeros((n,) + src.shape[1:], dtype=src.dtype)
    return out.index_add_(0, seg, src)
def _pad(x, pw):
    flat = tuple(v for pair in reversed(pw) for v in pair)
    return torch.nn.functional.pad(x, flat)

kernel_name = 'gated_mix__linear_attn_block__dense_activation_relu__prompt'

def setup_inputs():

    _w = (lambda a: (lambda t: t.to(torch.bfloat16) if t.is_floating_point() else t)(torch.as_tensor(a)))
    def _A_setup():
        B, S, D = 1, 2048, 512
        return {
            "x": _w((lambda *s: torch.randn(*s, dtype=torch.bfloat16) * 0.05)(B, S, D)),
            "wqkv": _w((lambda *s: torch.randn(*s, dtype=torch.bfloat16) * 0.8)(D, 3 * D)),
            "wo": _w((lambda *s: torch.randn(*s, dtype=torch.bfloat16) * 0.2)(D, D)),
        }
    _A_in = _A_setup()

    def _B_setup():
        B, S, D, Dff = 1, 2048, 512, 1792
        return {
            "x": _w((lambda *s: torch.randn(*s, dtype=torch.bfloat16) * 0.05)(B, S, D)),
            "w1": _w((lambda *s: torch.randn(*s, dtype=torch.bfloat16) * 0.05)(D, Dff)),
            "w2": _w((lambda *s: torch.randn(*s, dtype=torch.bfloat16) * 0.05)(Dff, D)),
        }
    _B_in = _B_setup()

    return {
        "A_x": _A_in["x"],
        "A_wqkv": _A_in["wqkv"],
        "A_wo": _A_in["wo"],
        "B_x": _B_in["x"],
        "B_w1": _B_in["w1"],
        "B_w2": _B_in["w2"],
        "gate_w": _w((lambda *s: torch.randn(*s, dtype=torch.bfloat16) * 0.05)(512) * 16.0),
    }

def reference(A_x, A_wqkv, A_wo, B_x, B_w1, B_w2, gate_w):
    def _A_ref(x, wqkv, wo):
        B, S, D = x.shape
        H = 32; Dh = D // H
        qkv = (lambda x, *d: x.permute(*d))((x @ wqkv).reshape(B, S, 3, H, Dh), 2, 0, 3, 1, 4)
        q, k, v = qkv[0], qkv[1], qkv[2]
        phi = lambda t: torch.where(t > 0, t + 1, torch.exp(t)) + 1e-6
        pq, pk = phi(q), phi(k)
        kv = torch.einsum("bhsd,bhse->bhde", pk, v)
        z = torch.einsum("bhsd->bhd", pk)
        num = torch.einsum("bhqd,bhde->bhqe", pq, kv)
        den = torch.einsum("bhqd,bhd->bhq", pq, z)[..., None] + 1e-6
        o = num / den
        return (lambda x, *d: x.permute(*d))(o, 0, 2, 1, 3).reshape(B, S, D) @ wo

    def _B_ref(x, w1, w2):
        h = torch.einsum("bsd,df->bsf", x, w1)
        zero = torch.zeros_like(h)
        h = torch.maximum(h, zero)
        return torch.einsum("bsf,fd->bsd", h, w2)

    x = A_x
    g = _sigmoid((x * gate_w).sum(-1, keepdims=True))
    a = _A_ref(x, A_wqkv, A_wo)
    b = _B_ref(x, B_w1, B_w2)
    return g * a + (1 - g) * b
```

```python
import re

TRANS = ('v_exp_f32', 'v_log_f32', 'v_rcp_f32', 'v_rsq_f32', 'v_sqrt_f32', 'v_sin_f32', 'v_cos_f32')

def regs_of(op):
    op = op.strip()
    op = op.lstrip('-')
    if op.startswith('abs(') : op = op[4:-1]
    m = re.fullmatch(r'([vs])\[(\d+):(\d+)\]', op)
    if m: return {(m.group(1), i) for i in range(int(m.group(2)), int(m.group(3)) + 1)}
    m = re.fullmatch(r'([vs])(\d+)', op)
    if m: return {(m.group(1), int(m.group(2)))}
    if op == 'vcc': return {('s', 'vcc')}
    if op == 'exec': return {('s', 'exec')}
    if op == 'm0': return {('s', 'm0')}
    return set()

class Ins:
    def __init__(self, text):
        self.text = text
        t = text.split(';')[0].strip()
        self.label = t.endswith(':')
        parts = t.split(None, 1)
        self.op = parts[0] if parts else ''
        rest = parts[1] if len(parts) > 1 else ''
        ops = [x.strip() for x in rest.split(',')] if rest else []
        self.mods = ''
        if ops:
            l = ops[-1].split()
            if len(l) > 1:
                ops[-1] = l[0]; self.mods = ' '.join(l[1:])
        self.ops = ops
        op = self.op
        self.kind = 'other'
        self.w = set(); self.r = set()
        R = lambda xs: set().union(*[regs_of(x) for x in xs]) if xs else set()
        if self.label or op.startswith('.'):
            self.kind = 'label'
        elif op.startswith('v_mfma'):
            self.kind = 'mfma'; self.w = R(ops[:1]); self.a = R(ops[1:3]); self.c = R(ops[3:4]); self.r = self.a | self.c
            self.passes = 8 if '32x32' in op else 4
        elif op.startswith('v_'):
            self.kind = 'valu'
            base = op.replace('_e32', '').replace('_e64', '').replace('_dpp', '')
            self.base = base
            self.trans = base in TRANS
            self.dpp = ('row_' in self.mods or 'quad_perm' in self.mods or op.endswith('_dpp'))
            self.perm = base.startswith('v_permlane')
            if base.startswith('v_cmp'):
                self.w = R(ops[:1]); self.r = R(ops[1:])
            elif self.perm:
                self.w = R(ops[:2]); self.r = R(ops[:2])
            elif base in ('v_readfirstlane_b32', 'v_readlane_b32'):
                self.w = R(ops[:1]); self.r = R(ops[1:])
            else:
                self.w = R(ops[:1]); self.r = R(ops[1:])
                if base in ('v_fmac_f32', 'v_dot2c_f32_bf16') or self.dpp: self.r |= self.w
        elif op.startswith('ds_read'):
            self.kind = 'ds'; self.w = R(ops[:1]); self.r = R(ops[1:])
        elif op.startswith('ds_write'):
            self.kind = 'ds'; self.r = R(ops)
        elif op.startswith('buffer_load'):
            self.kind = 'vmem'
            self.lds = ' lds' in (' ' + self.mods)
            if self.lds:
                self.r = R(ops) | {('s', 'm0')}
            else:
                self.w = R(ops[:1]); self.r = R(ops[1:])
        elif op.startswith('buffer_store') or op.startswith('buffer_atomic'):
            self.kind = 'vmem'; self.lds = False; self.r = R(ops); self.data = R(ops[:1])
            self.wide = op.endswith('x4') or op.endswith('x3')
        elif op.startswith('s_'):
            self.kind = 'salu'
            if op in ('s_waitcnt', 's_barrier', 's_nop', 's_endpgm', 's_branch', 's_setprio', 's_sleep') or op.startswith('s_cbranch'):
                pass
            elif op.startswith('s_cmp'):
                self.r = R(ops)
            else:
                self.w = R(ops[:1]); self.r = R(ops[1:])
                if 'saveexec' in op: self.w |= {('s', 'exec')}
        else:
            raise ValueError('unknown op ' + text)
    def states(self):
        if self.kind == 'label': return 0
        if self.op == 's_nop': return int(self.ops[0]) + 1
        return 1

def need(p, c):
    n = 0
    vw = {x for x in p.w if x[0] == 'v'}
    sw = {x for x in p.w if x[0] == 's'}
    if p.kind == 'valu':
        if c.kind == 'mfma' and vw & c.r: n = max(n, 2)
        if c.kind == 'valu':
            if (c.perm or c.dpp) and vw & c.r: n = max(n, 2)
            if c.base in ('v_readfirstlane_b32', 'v_readlane_b32') and vw & c.r: n = max(n, 1)
            if p.trans and not c.trans and vw & c.r: n = max(n, 1)
            if p.trans and c.trans and vw & c.r: n = max(n, 1)
            if sw & c.r: n = max(n, 2)
            if c.base == 'v_cndmask_b32' and ('s', 'vcc') in sw: n = max(n, 2)
        if c.kind == 'vmem' and sw & c.r: n = max(n, 5)
        if c.kind == 'salu' and sw & c.r: n = max(n, 1)
        if c.op in ('s_cbranch_vccz', 's_cbranch_vccnz') and ('s', 'vcc') in sw: n = max(n, 1)
    if p.kind == 'mfma':
        big = {4: 8, 8: 12}[p.passes]
        if c.kind == 'mfma':
            if p.w & c.a: n = max(n, big)
            if p.w & c.c and not (c.c == p.w and c.passes == p.passes): n = max(n, {4: 6, 8: 10}[p.passes])
            elif p.w & c.w and not (c.c == p.w): n = max(n, big)
        elif c.kind in ('valu', 'ds', 'vmem'):
            if p.w & (c.r | c.w): n = max(n, big)
        if c.kind == 'valu' and p.c & c.w: n = max(n, {4: 3, 8: 7}[p.passes])
        if c.kind in ('ds', 'vmem') and p.c & c.w: n = max(n, {4: 3, 8: 7}[p.passes])
    if p.kind == 'salu' and ('s', 'm0') in p.w and c.kind == 'vmem' and c.lds: n = max(n, 1)
    if p.kind == 'vmem' and getattr(p, 'wide', False) and p.data & c.w: n = max(n, 2)
    return n

def pad_hazards(lines):
    out = []
    hist = []
    for t in lines:
        c = Ins(t)
        if c.kind != 'label':
            dist = 0; req = 0
            for p in reversed(hist):
                if dist >= 13: break
                r = need(p, c) - dist
                if r > req: req = r
                dist += p.states()
            if req > 0:
                nop = Ins(f's_nop {req-1}')
                out.append(nop.text); hist.append(nop)
        out.append(t); hist.append(c)
        if len(hist) > 40: hist = hist[-30:]
    return out

class Prog:
    def __init__(self):
        self.lines = []
        self.vm = 0
        self.lg = 0
        self.vm_done = 0
        self.lg_done = 0
    def __call__(self, text):
        for t in text.split('\n'):
            t = t.strip()
            if not t: continue
            self.lines.append(t)
            op = t.split()[0]
            if op.startswith('buffer_'): self.vm += 1
            elif op.startswith('ds_'): self.lg += 1
    def vtok(self): return self.vm
    def ltok(self): return self.lg
    def wait(self, v=None, l=None):
        parts = []
        if v is not None and v > self.vm_done:
            n = min(self.vm - v, 63); parts.append(f'vmcnt({n})'); self.vm_done = self.vm - n
        if l is not None and l > self.lg_done:
            n = min(self.lg - l, 15); parts.append(f'lgkmcnt({n})'); self.lg_done = self.lg - n
        if parts: self.lines.append('s_waitcnt ' + ' '.join(parts))
    def side(self, text):
        for t in text.split('\n'):
            t = t.strip()
            if t: self.lines.append(t)
    def text(self):
        return '\n'.join(pad_hazards(self.lines))
```

```python
import sys
from dsl import Prog

NAME = 'gated_mix__linear_attn_block__dense_activation_relu__prompt_kernel'

FLAG = 0x0
G_KV, G_E, G_L, G_O = 0, 8, 24, 40
GATE = 0x10000
KVP = 0x20000
ZP = 0xA0000
A2 = 0x100000
TS = 0x1000000
TILE = 72 * 1024
SCR = 131072
OOB = 0x80000000

SX, SQKV, SW1, SWO, SW2, SWS, SOUT, SDBG, SGW = ('s[%d:%d]' % (4 * k + 4, 4 * k + 7) for k in range(9))
sW, sRG, sCH, sI, sJJ, sB, sU, sRHO = ('s%d' % k for k in range(40, 48))
sM0 = 's48'
sXB, sUB, sUB2 = 's49', 's50', 's51'
sC = 's52'
sT0, sT1, sT2, sT3 = 's53', 's54', 's55', 's56'
sA2S = 's57'
sNON = 's58'
sI2, sJ2, sR2 = 's59', 's60', 's61'
sA2L = 's62'
sBB = 's63'
sFL = 's64'
sIS2 = 's65'
sLOG2E, sEPS, sEPSL = 's66', 's67', 's68'
sSTEP = 69
sCNT = 's87'
sTS = 's88'

vL = 'v1'
vXa, vXb, vWq, vW1a, vW1b = 'v2', 'v3', 'v4', 'v5', 'v6'
vXR = ['v7', 'v8']
vWR = ['v9', 'v10']
vWB = ['v11', 'v12', 'v13']
vA2S, vL16 = 'v14', 'v15'
vBD = ['v16', 'v17']
vBR = ['v18', 'v19', 'v20', 'v21']
vFP = 'v22'
vT = ['v%d' % k for k in range(23, 36)]
EPS = 36
WF = [40, 56]
ACCB = 72
ACCA = 96
XF = 128
ACCH, ACCO, AF = 128, 160, 192
NAF = 8

def q(n, k=4): return f'v[{n}:{n+k-1}]'
def mfma(d, a, b, c): return f'v_mfma_f32_16x16x32_bf16 {q(d)}, {q(a)}, {q(b)}, {c}'

def emit(P, x):
    if callable(x): x()
    else: P(x)

def interleave(P, main, fill):
    n = len(main)
    if n == 0:
        for x in fill: emit(P, x)
        return
    k = 0
    for i, m in enumerate(main):
        emit(P, m)
        hi = (i + 1) * len(fill) // n
        while k < hi:
            emit(P, fill[k]); k += 1

class Gen:
    def __init__(self, D=4, stamps=False):
        self.D = D
        self.stamps = stamps
        self.nlab = 0
    def lab(self, s):
        self.nlab += 1
        return f'L{s}{self.nlab}'

    def stamp(self, P, k):
        if not self.stamps: return
        P.side(f's_memrealtime s[{90}:{91}]\ns_waitcnt lgkmcnt(0)\nv_mov_b32 {vT[12]}, s90\nv_mov_b32 {vT[11]}, {OOB}\n'
               f'v_writelane_b32 {vT[11]}, {k*4}, 0\nbuffer_store_dword {vT[12]}, {vT[11]}, {SWS}, {sTS} offen')
        P.lg_done = P.lg

    def prologue(self, P):
        P('s_cmp_ge_u32 s2, 256\ns_cbranch_scc1 Lend')
        P('s_load_dwordx4 s[72:75], s[0:1], 0\ns_load_dwordx2 s[76:77], s[0:1], 16\ns_load_dwordx4 s[80:83], s[0:1], 32\n'
          's_load_dwordx4 s[84:87], s[0:1], 48\ns_load_dwordx4 s[92:95], s[0:1], 64')
        P(f'v_and_b32 {vL}, 63, v0\nv_lshrrev_b32 {vT[0]}, 6, v0\nv_readfirstlane_b32 {sW}, {vT[0]}')
        P(f's_and_b32 {sRG}, {sW}, 3\ns_lshr_b32 {sCH}, {sW}, 2\ns_lshl_b32 {sM0}, {sW}, 12')
        P(f's_and_b32 {sT0}, s2, 7\ns_lshr_b32 {sT1}, s2, 3')
        P(f's_and_b32 {sT2}, {sT0}, 1\ns_lshr_b32 {sB}, {sT0}, 1\ns_and_b32 {sT3}, {sT1}, 7\ns_lshr_b32 {sJJ}, {sT1}, 3')
        P(f's_lshl_b32 {sI}, {sT2}, 3\ns_add_u32 {sI}, {sI}, {sT3}')
        P(f's_lshl_b32 {sU}, {sB}, 1\ns_lshr_b32 {sT2}, {sJJ}, 1\ns_add_u32 {sU}, {sU}, {sT2}')
        P(f's_lshl_b32 {sRHO}, {sJJ}, 1\ns_add_u32 {sRHO}, {sRHO}, {sT3}\ns_and_b32 {sT2}, {sB}, 1\ns_add_u32 {sRHO}, {sRHO}, {sT2}\ns_and_b32 {sRHO}, {sRHO}, 7')
        P(f's_and_b32 {sT2}, {sT1}, 3\ns_lshl_b32 {sI2}, {sT0}, 2\ns_add_u32 {sI2}, {sI2}, {sT2}\ns_lshr_b32 {sJ2}, {sT1}, 2')
        P(f's_lshl_b32 {sXB}, {sI}, 17')
        t = vT
        P(f'v_lshrrev_b32 {t[0]}, 3, {vL}\nv_lshrrev_b32 {t[1]}, 4, {vL}\nv_and_b32 {t[2]}, 7, {vL}')
        P(f's_lshl_b32 {sT0}, {sW}, 4\nv_add_u32 {t[3]}, {sT0}, {t[0]}\nv_xor_b32 {t[4]}, {t[2]}, {t[1]}')
        P(f'v_lshlrev_b32 {t[3]}, 10, {t[3]}\nv_lshl_add_u32 {vXa}, {t[4]}, 4, {t[3]}')
        P(f'v_xor_b32 {vXb}, 64, {vXa}\nv_add_u32 {vXb}, {8192-1024}, {vXb}')
        P(f's_lshl_b32 {sT0}, {sCH}, 5\ns_and_b32 {sT1}, {sW}, 1\ns_lshl_b32 {sT1}, {sT1}, 4\ns_add_u32 {sT0}, {sT0}, {sT1}\n'
          f's_and_b32 {sT1}, {sW}, 2\ns_lshl_b32 {sT1}, {sT1}, 1\ns_add_u32 {sT0}, {sT0}, {sT1}')
        P(f'v_lshrrev_b32 {t[3]}, 5, {vL}\nv_and_b32 {t[4]}, 3, {t[0]}\nv_lshl_add_u32 {t[5]}, {t[3]}, 3, {t[4]}\nv_add_u32 {t[5]}, {sT0}, {t[5]}')
        P(f'v_and_b32 {t[6]}, 3, {t[1]}\nv_lshlrev_b32 {t[6]}, 1, {t[6]}\nv_xor_b32 {t[6]}, {t[2]}, {t[6]}\nv_lshlrev_b32 {t[6]}, 4, {t[6]}')
        P(f'v_mul_u32_u24 {vWq}, 3072, {t[5]}\nv_add_u32 {vWq}, {vWq}, {t[6]}')
        P(f'v_mul_u32_u24 {vW1a}, 3584, {t[5]}\nv_add_u32 {vW1a}, {vW1a}, {t[6]}\nv_add_u32 {vW1b}, 128, {vW1a}\nv_add_u32 {vW1a}, 1024, {vW1a}')
        P(f's_lshl_b32 {sT0}, {sCH}, 3\nv_lshl_add_u32 {t[7]}, {t[3]}, 2, {t[4]}\nv_add_u32 {t[7]}, {sT0}, {t[7]}')
        P(f'v_lshl_add_u32 {vBD[0]}, {t[7]}, 10, {t[6]}\nv_add_u32 {vBD[1]}, {16384-1024}, {vBD[0]}')
        P(f'v_lshlrev_b32 {vL16}, 4, {vL}')
        P('s_waitcnt lgkmcnt(0)')
        def srd(n, lo, size, shift):
            if shift:
                P(f's_sub_u32 s{n}, s{lo}, 4096\ns_subb_u32 s{n+1}, s{lo+1}, 0')
            else:
                P(f's_mov_b32 s{n}, s{lo}\ns_mov_b32 s{n+1}, s{lo+1}')
            P(f's_mov_b32 s{n+2}, {size + (4096 if shift else 0)}\ns_mov_b32 s{n+3}, 0x00020000')
        srd(4, 72, 2048 * 1024, 0)
        srd(8, 74, 512 * 3072, 1)
        srd(12, 80, 512 * 3584, 1)
        srd(24, 94, 0x10000000, 0)
        srd(36, 84, 1024, 0)
        srd(16, 76, 512 * 1024, 1)
        srd(20, 82, 1792 * 1024, 1)
        srd(28, 86, 2048 * 1024, 0)
        srd(32, 92, 256, 0)

    def leader_loads(self, P):
        l = self.lab('nl')
        P.side(f's_cmp_lg_u32 s2, 0\ns_cbranch_scc1 {l}\ns_cmp_lg_u32 {sW}, 7\ns_cbranch_scc1 {l}')
        P.side(f'v_lshrrev_b32 {vT[8]}, 2, {vL}\nv_and_b32 {vT[9]}, 3, {vL}\nv_lshlrev_b32 {vT[9]}, 4, {vT[9]}\nv_lshl_add_u32 {vT[8]}, {vT[8]}, 8, {vT[9]}')
        for m in range(4):
            P.side(f's_mov_b32 {sT0}, {FLAG + m*4096}\nbuffer_load_dwordx4 {q(ACCB+4*m)}, {vT[8]}, {SWS}, {sT0} offen sc1')
        P.side(f'{l}:')

    def leader_pick(self, P):
        l = self.lab('np'); lp = self.lab('npl')
        P.side(f's_cmp_lg_u32 s2, 0\ns_cbranch_scc1 {l}\ns_cmp_lg_u32 {sW}, 7\ns_cbranch_scc1 {l}')
        P.side(f's_mov_b32 {sT0}, 0\n{lp}:\ns_add_u32 {sT0}, {sT0}, 1\ns_mov_b64 s[90:91], 0')
        for k in range(16):
            P.side(f'v_cmp_eq_u32 vcc, {sT0}, v{ACCB+k}\ns_or_b64 s[90:91], s[90:91], vcc')
        P.side(f's_cbranch_scc1 {lp}')
        P.side(f'v_mov_b32 {vT[8]}, {sT0}\nv_mov_b32 {vT[9]}, {OOB}\nv_writelane_b32 {vT[9]}, 0, 0\n'
               f'buffer_store_dword {vT[8]}, {vT[9]}, {SDBG}, 0 offen sc1\n{l}:')

    def late_setup(self, P, T):
        t = vT
        P(f'v_and_b32 {t[0]}, 15, {vL}\nv_lshrrev_b32 {t[1]}, 4, {vL}')
        P(f'v_lshrrev_b32 {t[2]}, 1, {t[0]}\nv_xor_b32 {t[2]}, {t[2]}, {t[1]}\nv_lshlrev_b32 {t[2]}, 4, {t[2]}\nv_lshl_add_u32 {t[2]}, {t[0]}, 7, {t[2]}')
        P(f's_lshl_b32 {sT0}, {sRG}, 13\nv_add_u32 {vXR[0]}, {sT0}, {t[2]}\nv_xor_b32 {vXR[1]}, 64, {vXR[0]}')
        P(f'v_lshrrev_b32 {t[2]}, 2, {vL}\nv_and_b32 {t[2]}, 7, {t[2]}\nv_lshlrev_b32 {t[2]}, 7, {t[2]}')
        P(f'v_and_b32 {t[3]}, 3, {vL}\nv_lshl_add_u32 {t[2]}, {t[3]}, 3, {t[2]}')
        P(f'v_lshrrev_b32 {t[3]}, 3, {vL}\nv_and_b32 {t[3]}, 3, {t[3]}\nv_lshl_add_u32 {t[2]}, {t[3]}, 5, {t[2]}')
        P(f'v_lshrrev_b32 {t[4]}, 5, {vL}')
        P(f'v_lshl_add_u32 {t[5]}, {t[4]}, 12, {t[2]}')
        P(f's_lshl_b32 {sT0}, {sCH}, 6\nv_xor_b32 {vWR[0]}, {sT0}, {t[5]}\nv_xor_b32 {vWR[1]}, 32, {vWR[0]}')
        if T == 1:
            P(f's_lshl_b32 {sT0}, {sJJ}, 1\ns_mul_i32 {sT1}, {sCH}, 3\ns_add_u32 {sT0}, {sT0}, {sT1}\ns_sub_u32 {sT0}, {sT0}, 2')
            for m in range(3):
                P(f's_and_b32 {sT1}, {sT0}, 3\ns_lshl_b32 {sT1}, {sT1}, 5\ns_lshr_b32 {sT2}, {sT0}, 2\ns_lshl_b32 {sT2}, {sT2}, 10\n'
                  f's_add_u32 {sT1}, {sT1}, {sT2}\nv_xor_b32 {vWB[m]}, {sT1}, {t[5]}\ns_add_u32 {sT0}, {sT0}, 1')
        P(f'v_lshl_add_u32 {t[5]}, {t[4]}, 10, {t[2]}\ns_lshl_b32 {sT0}, {sRG}, 12\nv_add_u32 {vBR[0]}, {sT0}, {t[5]}')
        for b in range(1, 4): P(f'v_xor_b32 {vBR[b]}, {32*b}, {vBR[0]}')
        P(f'v_and_b32 {t[3]}, 31, {vL}\nv_lshlrev_b32 {t[3]}, 4, {t[3]}\nv_mul_u32_u24 {t[4]}, {TILE}, {t[4]}\nv_add_u32 {vA2S}, {t[3]}, {t[4]}')
        P(f's_lshl_b32 {sT0}, {sI}, 3\ns_lshl_b32 {sT1}, {sRG}, 1\ns_add_u32 {sT0}, {sT0}, {sT1}\ns_mul_i32 {sA2S}, {sT0}, {TILE}\ns_add_u32 {sA2S}, {sA2S}, {A2}')
        P(f's_lshl_b32 {sT0}, {sI2}, 2\ns_lshl_b32 {sT1}, {sCH}, 1\ns_add_u32 {sT0}, {sT0}, {sT1}\ns_mul_i32 {sA2L}, {sT0}, {TILE}\ns_add_u32 {sA2L}, {sA2L}, {A2}')
        P(f's_lshl_b32 {sBB}, {sJ2}, 7\ns_add_u32 {sBB}, {sBB}, 4096')
        P(f's_lshl_b32 {sFL}, {sU}, 2\ns_lshr_b32 {sIS2}, {sI2}, 1\ns_lshl_b32 {sIS2}, {sIS2}, 8')
        P(f'v_and_b32 {t[3]}, 1, {vL}\ns_lshl_b32 {sT0}, {sRG}, 1\nv_add_u32 {t[3]}, {sT0}, {t[3]}\nv_lshlrev_b32 {vFP}, 2, {t[3]}')
        P(f's_mov_b32 {sLOG2E}, 0x3fb8aa3b\ns_mov_b32 {sEPS}, 0x358637bd\ns_mov_b32 {sEPSL}, 0xb5c1a2a0')
        for k in range(4): P(f'v_mov_b32 v{EPS+k}, {sEPS}')
        P(f's_and_b32 {sT0}, {sI2}, 3\ns_lshl_b32 {sT0}, {sT0}, 1\ns_add_u32 {sR2}, {sT0}, {sJ2}')
        P(f's_mul_i32 {sT1}, {sRG}, 14\ns_add_u32 {sT1}, {sT1}, 16')
        for n in range(8):
            P(f's_add_u32 {sT0}, {sR2}, {n}\ns_and_b32 {sT0}, {sT0}, 7\ns_cmp_ge_u32 {sT0}, 4\ns_cselect_b32 {sT2}, 6, 0\n'
              f's_add_u32 {sT0}, {sT0}, {sT2}\ns_add_u32 s{sSTEP+n}, {sT0}, {sT1}')
        P(f's_cmp_ge_u32 {sR2}, 12\ns_cselect_b32 {sT2}, 12, 0\ns_sub_u32 {sT0}, {sR2}, {sT2}\ns_cmp_ge_u32 {sT0}, 6\ns_cselect_b32 {sT2}, 6, 0\ns_sub_u32 {sT0}, {sT0}, {sT2}')
        P(f's_add_u32 {sT1}, {sT1}, 4')
        for n in range(6):
            P(f's_add_u32 s{sSTEP+8+n}, {sT0}, {sT1}\ns_add_u32 {sT0}, {sT0}, 1\ns_cmp_ge_u32 {sT0}, 6\ns_cselect_b32 {sT0}, 0, {sT0}')
        P(f's_lshl_b32 {sT1}, {sRG}, 2')
        for n in range(4):
            P(f's_add_u32 {sT0}, {sR2}, {n}\ns_and_b32 {sT0}, {sT0}, 3\ns_add_u32 s{sSTEP+14+n}, {sT0}, {sT1}')
        if self.stamps:
            P(f's_lshl_b32 {sTS}, s2, 3\ns_add_u32 {sTS}, {sTS}, {sW}\ns_lshl_b32 {sTS}, {sTS}, 7\ns_add_u32 {sTS}, {sTS}, {TS}')

    def dma(self, v, srd, s, off): return f'buffer_load_dwordx4 {v}, {srd}, {s} offen offset:{off} lds'
    def nextc(self): return [f's_add_u32 {sC}, {sC}, 1', f's_and_b32 {sC}, {sC}, 7']
    def m0(self, region): return f's_add_u32 m0, {sM0}, {region*32768}'

    def grpA(self, T, region):
        pitch = 3072 if T == 1 else 3584
        o = [self.m0(region), f's_lshl_b32 {sT0}, {sC}, 7', f's_add_u32 {sT0}, {sT0}, {sXB}',
             self.dma(vXa, SX, sT0, 0), self.dma(vXb, SX, sT0, 1024),
             f's_mul_i32 {sT1}, {sC}, {64*pitch}', f's_add_u32 {sT1}, {sT1}, {sUB}']
        if T == 1: o += [self.dma(vWq, SQKV, sT1, 2048), self.dma(vWq, SQKV, sT1, 3072)]
        else: o += [self.dma(vW1a, SW1, sT1, 2048), self.dma(vW1b, SW1, sT1, 3072)]
        return o + self.nextc()
    def grpB(self, region):
        o = [self.m0(region)]
        for h in range(2):
            o += [f's_mul_i32 {sT1}, {sC}, {64*3584}', f's_add_u32 {sT1}, {sT1}, {sUB2}']
            if h: o += [f's_sub_u32 {sT1}, {sT1}, 2048']
            o += [self.dma(vW1a, SW1, sT1, 2048*h), self.dma(vW1b, SW1, sT1, 2048*h + 1024)] + self.nextc()
        return o
    def grpQ(self, region):
        o = [self.m0(region)]
        for m in range(4):
            o += [f's_mul_i32 {sT1}, {sC}, {64*3072}', f's_add_u32 {sT1}, {sT1}, {sUB2}']
            if m: o += [f's_sub_u32 {sT1}, {sT1}, {1024*m}']
            o += [self.dma(vWq, SQKV, sT1, 1024*m)] + self.nextc()
        return o
    def grpS(self, n, region):
        o = [self.m0(region)]
        for h in range(2):
            st = 2*n + h
            srd = SW2 if st < 14 else SWO
            adj = (-16*32768 if st < 14 else 0) - 2048*h
            o += [f's_lshl_b32 {sT1}, s{sSTEP+st}, 15', f's_add_u32 {sT1}, {sT1}, {sBB}']
            if adj: o += [f's_sub_u32 {sT1}, {sT1}, {-adj}']
            o += [self.dma(vBD[0], srd, sT1, 2048*h), self.dma(vBD[1], srd, sT1, 2048*h + 1024)]
        return o

    def h_epi(self, acc0, acc1, k2expr_sgpr, imm, relu=True):
        o = [f'v_cvt_pk_bf16_f32 v{acc0}, v{acc0}, v{acc0+1}', f'v_cvt_pk_bf16_f32 v{acc0+1}, v{acc0+2}, v{acc0+3}',
             f'v_cvt_pk_bf16_f32 v{acc0+2}, v{acc1}, v{acc1+1}', f'v_cvt_pk_bf16_f32 v{acc0+3}, v{acc1+2}, v{acc1+3}']
        if relu: o += [f'v_pk_max_i16 v{acc0+k}, v{acc0+k}, 0' for k in range(4)]
        o += [f'v_permlane32_swap_b32 v{acc0}, v{acc0+2}', f'v_permlane32_swap_b32 v{acc0+1}, v{acc0+3}',
              f'buffer_store_dwordx4 {q(acc0)}, {vA2S}, {SWS}, {k2expr_sgpr} offen offset:{imm} sc1']
        return o
    def phi(self, regs):
        o = []
        ts = vT[0:8]
        for i in range(0, len(regs), 4):
            grp = regs[i:i+4]; tt = ts[(i//4 % 2)*4:(i//4 % 2)*4+4]
            o += [f'v_fma_f32 {t}, v{r}, {sLOG2E}, {vT[8]}' for r, t in zip(grp, tt)]
            o += [f'v_exp_f32_e64 {t}, {t} clamp' for t in tt]
            o += [f'v_max_f32 v{r}, {sEPS}, v{r}' for r in grp]
            o += [f'v_add_f32 v{r}, v{r}, {t}' for r, t in zip(grp, tt)]
        return o
    def gate(self, P):
        a, b = ACCB + 16, ACCB + 20
        t = vT[0]
        o = [f'v_dot2_f32_bf16 {t}, v{a}, v{b}, 0'] + [f'v_dot2_f32_bf16 {t}, v{a+k}, v{b+k}, {t}\ns_nop 0' for k in range(1, 4)]
        o += ['s_nop 2']
        for sh in (1, 2, 4, 8): o += [f'v_add_f32_dpp {t}, {t}, {t} row_ror:{sh} row_mask:0xf bank_mask:0xf']
        o += [f'v_add_f32_dpp {t}, {t}, {t} row_bcast:15 row_mask:0xa bank_mask:0xf', f'v_add_f32_dpp {t}, {t}, {t} row_bcast:31 row_mask:0xc bank_mask:0xf']
        o += [f'v_mul_f32 {t}, 0xbfb8aa3b, {t}', f'v_exp_f32 {t}, {t}', f'v_add_f32 {t}, 1.0, {t}', f'v_rcp_f32 {t}, {t}',
              f'v_mov_b32 {vT[1]}, {OOB}', f'v_writelane_b32 {vT[1]}, 0, 63',
              f's_lshl_b32 {sT2}, {sCNT}, 2', f's_add_u32 {sT2}, {sT2}, {GATE}',
              f'buffer_store_dword {t}, {vT[1]}, {SWS}, {sT2} offen sc1']
        return o
    def flag_store(self, P, group_sgpr_expr, word_sgpr):
        l = self.lab('fs')
        P.side(f's_cmp_lg_u32 {sW}, 7\ns_cbranch_scc1 {l}\n{group_sgpr_expr}\ns_add_u32 {sT3}, {sT3}, {word_sgpr}\n'
               f'v_mov_b32 {vT[9]}, {sNON}\nv_mov_b32 {vT[10]}, {OOB}\nv_writelane_b32 {vT[10]}, 0, 0\n'
               f'buffer_store_dword {vT[9]}, {vT[10]}, {SWS}, {sT3} offen sc1\n{l}:')
    def check(self, P, tok, vreg, voff, soff_setup):
        ok = self.lab('ok'); sp = self.lab('sp')
        P.wait(v=tok)
        P.side(f'v_cmp_ne_u32 vcc, {sNON}, {vreg}\ns_cbranch_vccz {ok}\n{soff_setup}\ns_mov_b32 {sCNT}, 0\n{sp}:\n'
               f'buffer_load_dword {vreg}, {voff}, {SWS}, {sT3} offen sc1\ns_add_u32 {sCNT}, {sCNT}, 1\ns_waitcnt vmcnt(0)\n'
               f'v_cmp_ne_u32 vcc, {sNON}, {vreg}\ns_cmp_ge_u32 {sCNT}, 0x20000\ns_cbranch_scc1 {ok}\ns_cbranch_vccnz {sp}\n{ok}:')
    def nonce_check(self, P, tok):
        ok = self.lab('nk'); sp = self.lab('ns')
        P.wait(v=tok)
        P.side(f'v_readfirstlane_b32 {sNON}, {vT[11]}\ns_cmp_lg_u32 {sNON}, 0\ns_cbranch_scc1 {ok}\ns_mov_b32 {sCNT}, 0\n{sp}:\n'
               f'buffer_load_dword {vT[11]}, {vT[12]}, {SDBG}, 0 offen sc1\ns_add_u32 {sCNT}, {sCNT}, 1\ns_waitcnt vmcnt(0)\n'
               f'v_readfirstlane_b32 {sNON}, {vT[11]}\ns_cmp_ge_u32 {sCNT}, 0x20000\ns_cbranch_scc1 {ok}\ns_cmp_eq_u32 {sNON}, 0\ns_cbranch_scc1 {sp}\n{ok}:')

    def run_ksteps(self, P, ks):
        tok = None
        for i, k in enumerate(ks):
            fill = []
            if k.get('start'): fill = k['start']()
            elif tok is not None: P.wait(l=tok)
            prev = ks[i-1]['mfmas'] if i else self.carry
            rd = list(k['reads'])
            ntok = [None]
            items = rd + [lambda: ntok.__setitem__(0, P.ltok())] + fill + list(k.get('fill', []))
            interleave(P, prev, items)
            tok = ntok[0]
        self.carry = ks[-1]['mfmas']; self.carry_tok = tok
    def flush(self, P, fill=()):
        P.wait(l=self.carry_tok)
        interleave(P, self.carry, list(fill))
        self.carry = []

    def body(self, T):
        P = Prog()
        self.carry = []
        D = self.D
        groups = [('A', n) for n in range(8)] + ([('B', n) for n in range(4)] if T == 1 else [('Q', n) for n in range(2)]) + [('S', n) for n in range(9)]
        nS0 = len(groups) - 9
        gtok = {}
        def gcode(n):
            kind, m = groups[n]; r = n % 4
            return {'A': lambda: self.grpA(T, r), 'B': lambda: self.grpB(r), 'Q': lambda: self.grpQ(r), 'S': lambda: self.grpS(m, r)}[kind]()
        def gitems(n):
            if n >= len(groups): return []
            return gcode(n) + [lambda: gtok.__setitem__(n, P.vtok())]
        hi = [False]
        def region_imm(n, regs):
            want = (n % 4) >= 2
            return ((n % 4) & 1) * 32768, want
        def toggle(regs):
            for r in regs: P(f'v_xor_b32 {r}, 0x10000, {r}')

        if T == 1:
            P(f's_lshl_b32 {sUB}, {sU}, 7\ns_add_u32 {sUB}, {sUB}, {4096 - 2048 + 1024}')
            P(f's_mul_i32 {sUB2}, {sB}, 896\ns_lshl_b32 {sT0}, {sJJ}, 7\ns_add_u32 {sUB2}, {sUB2}, {sT0}\ns_add_u32 {sUB2}, {sUB2}, {4096 - 1024 + 128}')
        else:
            P(f's_mul_i32 {sUB}, {sB}, 896\ns_cmp_eq_u32 {sJJ}, 0\ns_cselect_b32 {sT0}, 0, 640\ns_add_u32 {sUB}, {sUB}, {sT0}\ns_add_u32 {sUB}, {sUB}, {4096 - 3072}')
            P(f's_lshl_b32 {sUB2}, {sU}, 7\ns_add_u32 {sUB2}, {sUB2}, 4096')
        P(f's_mov_b32 {sC}, {sRHO}')
        self.leader_loads(P)
        for x in gitems(0): emit(P, x)
        P(f's_lshl_b32 {sT0}, {sI}, 4\ns_lshl_b32 {sT1}, {sB}, 2\ns_add_u32 {sT0}, {sT0}, {sT1}\ns_add_u32 {sT0}, {sT0}, {sJJ}\n'
          f's_lshl_b32 {sT0}, {sT0}, 3\ns_add_u32 {sCNT}, {sT0}, {sW}\ns_lshl_b32 {sT0}, {sCNT}, 10')
        P(f'buffer_load_dwordx4 {q(ACCB+16)}, {vL16}, {SX}, {sT0} offen\nbuffer_load_dwordx4 {q(ACCB+20)}, {vL16}, {SGW}, 0 offen')
        for n in range(1, 4):
            for x in gitems(n): emit(P, x)
        self.late_setup(P, T)
        self.stamp(P, 0)
        allregs = vXR + vWR + (vWB if T == 1 else []) + vBR
        state = {'hi': False}
        def start(n, pre=None, post=None, extra_v=None):
            def f():
                v = gtok.get(n)
                if extra_v is not None: v = max(v or 0, extra_v())
                P.wait(v=v, l=P.ltok())
                if pre: pre()
                P('s_barrier')
                want = (n % 4) >= 2
                if want != state['hi']:
                    toggle(state['regs']); state['hi'] = want
                if post: post()
                return gitems(n + 3) if n >= 1 else []
            return f
        state['regs'] = allregs
        ntok = {}
        ks = []
        for d in range(8):
            base = ((d % 4) & 1) * 32768
            for s in range(2):
                wf = WF[s]
                rd = []
                for tt in range(2):
                    rd.append(f'ds_read_b128 {q(XF + ((d*2+s)*2+tt)*4)}, {vXR[s]} offset:{base + tt*4096}')
                for blk in range(4):
                    for h in range(2):
                        rd.append(f'ds_read_b64_tr_b16 {q(wf + blk*4 + 2*h, 2)}, {vWR[blk&1]} offset:{base + s*16384 + h*8192 + 2048 + (blk>>1)*1024}')
                mf = []
                for blk in range(4):
                    for tt in range(2):
                        acc = ACCA + (blk*2+tt)*4; x = XF + ((d*2+s)*2+tt)*4
                        c = q(acc) if (d or s) else (q(EPS) if (T == 1 and blk < 2) else '0')
                        mf.append(mfma(acc, x, wf + blk*4, c) if T == 1 else mfma(acc, wf + blk*4, x, c))
                k = {'reads': rd, 'mfmas': mf}
                if s == 0:
                    post = None
                    if d == 1: post = lambda: self.leader_pick(P)
                    k['start'] = start(d, post=post)
                if d == 2 and s == 1: k['fill'] = self.gate(P)
                if d == 4 and s == 1:
                    k['fill'] = [f'v_mov_b32 {vT[12]}, 0', f'buffer_load_dword {vT[11]}, {vT[12]}, {SDBG}, 0 offen sc1', lambda: ntok.__setitem__('n', P.vtok())]
                if d == 7 and s == 1: k['fill'] = [lambda: self.nonce_check(P, ntok['n'])]
                ks.append(k)
        self.run_ksteps(P, ks)
        self.stamp(P, 1)
        state['regs'] = (vWB if T == 1 else vWR) + vBR
        st = {}
        if T == 1:
            ONES = WF[0] + 12
            epi = [f'v_mov_b32 {vT[8]}, {sEPSL}'] + [f'v_mov_b32 v{ONES+k}, 0x3f803f80' for k in range(4)]
            for hb in range(2):
                kacc = ACCA + hb*8; vacc = ACCA + 16 + hb*8
                epi += self.phi(list(range(kacc, kacc+8)))
                epi += [f'v_cvt_pk_bf16_f32 v{kacc+j}, v{kacc+2*j}, v{kacc+2*j+1}' for j in range(4)]
                epi += [f'v_cvt_pk_bf16_f32 v{vacc+j}, v{vacc+2*j}, v{vacc+2*j+1}' for j in range(4)]
                epi += [mfma(kacc+4, kacc, vacc, '0'), mfma(vacc+4, kacc, ONES, '0')]
            epi += [f's_lshl_b32 {sT2}, {sCH}, 3', f's_add_u32 {sT2}, {sT2}, {sRG}', f's_lshl_b32 {sT2}, {sT2}, 10', f's_add_u32 {sT2}, {sT2}, {SCR}',
                    f'v_add_u32 {vT[0]}, {sT2}, {vL16}']
            for hb in range(2):
                epi += [f'ds_write_b128 {vT[0]}, {q(ACCA+hb*8+4)} offset:{hb*4096}', f'ds_write_b128 {vT[0]}, {q(ACCA+16+hb*8+4)} offset:{16384+hb*4096}']
            def kv_out():
                P(f's_add_u32 {sT2}, {sM0}, {SCR}\nv_add_u32 {vT[0]}, {sT2}, {vL16}')
                for r in range(4): P(f'ds_read_b128 {q(ACCA+4*r)}, {vT[0]} offset:{r*1024}')
                st['kvl'] = P.ltok()
            def kv_out2():
                o = [lambda: P.wait(l=st['kvl'])]
                for k in range(4): o += [f'v_add_f32 v{ACCA+k}, v{ACCA+k}, v{ACCA+4+k}', f'v_add_f32 v{ACCA+8+k}, v{ACCA+8+k}, v{ACCA+12+k}']
                for k in range(4): o += [f'v_add_f32 v{ACCA+k}, v{ACCA+k}, v{ACCA+8+k}']
                o += [f's_lshl_b32 {sT2}, {sU}, 4', f's_add_u32 {sT2}, {sT2}, {sI}', f's_lshl_b32 {sT2}, {sT2}, 2', f's_add_u32 {sT2}, {sT2}, {sRG}',
                      f's_lshl_b32 {sT3}, {sT2}, 10', f's_add_u32 {sT3}, {sT3}, {KVP}', f's_lshl_b32 {sT2}, {sT2}, 6', f's_add_u32 {sT2}, {sT2}, {ZP}',
                      f's_cmp_eq_u32 {sCH}, 0', f's_cselect_b32 {sT3}, {sT3}, {sT2}', f's_cselect_b32 {sT2}, 0, 15',
                      f'v_and_b32 {vT[1]}, {sT2}, {vL}', f'v_cmp_eq_u32 vcc, 0, {vT[1]}', f's_cselect_b32 {sT2}, 4, 0',
                      f'v_lshlrev_b32 {vT[1]}, {sT2}, {vL}', f'v_mov_b32 {vT[2]}, {OOB}', f'v_cndmask_b32 {vT[1]}, {vT[2]}, {vT[1]}, vcc',
                      f'buffer_store_dwordx4 {q(ACCA)}, {vT[1]}, {SWS}, {sT3} offen sc1', lambda: st.__setitem__('kv', P.vtok())]
                return o
            ks = []
            for n in range(4):
                gi = 8 + n; base = ((gi % 4) & 1) * 32768
                for dd in range(2):
                    for s in range(2):
                        d = 2*n + dd; wf = WF[s]
                        rd = []; mf = []
                        for m in range(3):
                            for h in range(2):
                                rd.append(f'ds_read_b64_tr_b16 {q(wf + m*4 + 2*h, 2)}, {vWB[m]} offset:{base + s*16384 + h*8192 + dd*2048}')
                            for tt in range(2):
                                acc = ACCB + (m*2+tt)*4
                                mf.append(mfma(acc, wf + m*4, XF + ((d*2+s)*2+tt)*4, q(acc) if (d or s) else '0'))
                        k = {'reads': rd, 'mfmas': mf}
                        j = dd*2 + s
                        if j == 0:
                            if n == 1: k['start'] = start(gi, post=kv_out)
                            elif n == 3:
                                k['start'] = start(gi, extra_v=lambda: st['kv'],
                                                   post=lambda: self.flag_store(P, f's_lshl_b32 {sT3}, {sU}, 8\ns_lshl_b32 {sT2}, {sI}, 2', sT2))
                            else: k['start'] = start(gi)
                        if n == 0 and j >= 1:
                            k['fill'] = epi[(j-1)*len(epi)//3: j*len(epi)//3]
                        if n == 1 and j == 0: k['fill'] = kv_out2()
                        ks.append(k)
            self.run_ksteps(P, ks)
            self.flush(P)
            self.stamp(P, 2)
            P(f's_mul_i32 {sT2}, {sB}, 448\ns_mul_i32 {sT3}, {sJJ}, 96\ns_add_u32 {sT2}, {sT2}, {sT3}\ns_mul_i32 {sT3}, {sCH}, 48\n'
              f's_add_u32 {sT2}, {sT2}, {sT3}\ns_add_u32 {sT2}, {sT2}, {512 + 64 - 32}\ns_lshl_b32 {sT2}, {sT2}, 5\ns_add_u32 {sT2}, {sT2}, {sA2S}')
            P(f's_add_u32 {sT3}, {sIS2}, {G_E*256}\nbuffer_load_dword {vT[11]}, {vFP}, {SWS}, {sT3} offen sc1')
            st['fe'] = P.vtok()
            for m in range(3):
                for x in self.h_epi(ACCB + m*8, ACCB + m*8 + 4, sT2, m*512): P(x)
            st['pub'] = P.vtok()
            pub_group = G_L
        else:
            epi = [f's_mul_i32 {sT2}, {sB}, 448', f's_cmp_eq_u32 {sJJ}, 0', f's_cselect_b32 {sT3}, 0, 320', f's_add_u32 {sT2}, {sT2}, {sT3}',
                   f's_lshl_b32 {sT3}, {sCH}, 5', f's_add_u32 {sT2}, {sT2}, {sT3}', f's_add_u32 {sT2}, {sT2}, 512', f's_lshl_b32 {sT2}, {sT2}, 5',
                   f's_add_u32 {sT2}, {sT2}, {sA2S}']
            for blk in range(4):
                epi += self.h_epi(ACCA + blk*8, ACCA + blk*8 + 4, sT2, (blk >> 1)*2048 + (blk & 1)*512)
            epi += [lambda: st.__setitem__('e', P.vtok())]
            ks = []
            for n in range(2):
                gi = 8 + n; base = ((gi % 4) & 1) * 32768
                for dd in range(4):
                    for s in range(2):
                        d = 4*n + dd; wf = WF[s]
                        rd = []; mf = []
                        for m in range(2):
                            for h in range(2):
                                rd.append(f'ds_read_b64_tr_b16 {q(wf + m*4 + 2*h, 2)}, {vWR[m]} offset:{base + s*16384 + h*8192 + dd*1024}')
                            for tt in range(2):
                                acc = ACCB + (m*2+tt)*4
                                mf.append(mfma(acc, wf + m*4, XF + ((d*2+s)*2+tt)*4, q(acc) if (d or s) else q(EPS)))
                        k = {'reads': rd, 'mfmas': mf}
                        j = dd*2 + s
                        if j == 0: k['start'] = start(gi)
                        if n == 0 and 1 <= j <= 4:
                            k['fill'] = epi[(j-1)*len(epi)//4: j*len(epi)//4]
                        ks.append(k)
            self.run_ksteps(P, ks)
            self.flush(P)
            self.stamp(P, 2)
            P(f'v_and_b32 {vT[10]}, 15, {vL}\nv_lshlrev_b32 {vT[10]}, 2, {vT[10]}')
            P.wait(v=st['e'], l=P.ltok())
            P('s_barrier')
            self.flag_store(P, f's_lshl_b32 {sT3}, {sI}, 8\ns_add_u32 {sT3}, {sT3}, {G_E*256}', sFL)
            P(f'v_and_b32 {vT[10]}, 15, {vL}\nv_lshlrev_b32 {vT[10]}, 2, {vT[10]}')
            P(f's_lshl_b32 {sT3}, {sU}, 8\nbuffer_load_dword {vT[11]}, {vT[10]}, {SWS}, {sT3} offen sc1')
            tk = P.vtok()
            for x in gitems(10 + 3): emit(P, x)
            P(f'v_mov_b32 {vT[8]}, {sEPSL}')
            for x in self.phi(list(range(ACCB, ACCB+16))): P(x)
            PQ = ACCB + 16
            for tt in range(2):
                for hb in range(2):
                    a = ACCB + (hb*2+tt)*4
                    P(f'v_cvt_pk_bf16_f32 v{PQ+tt*4+hb*2}, v{a}, v{a+1}\nv_cvt_pk_bf16_f32 v{PQ+tt*4+hb*2+1}, v{a+2}, v{a+3}')
            self.check(P, tk, vT[11], vT[10], f's_lshl_b32 {sT3}, {sU}, 8')
            self.stamp(P, 3)
            PL = 128
            P(f's_lshl_b32 {sT2}, {sU}, 4\ns_lshl_b32 {sT3}, {sRG}, 2\ns_add_u32 {sT2}, {sT2}, {sT3}\ns_lshl_b32 {sT2}, {sT2}, 1\ns_add_u32 {sT2}, {sT2}, {sCH}')
            P(f's_lshl_b32 {sT3}, {sT2}, 11\ns_add_u32 {sT3}, {sT3}, {KVP}\ns_lshl_b32 {sT2}, {sT2}, 7\ns_add_u32 {sT2}, {sT2}, {ZP}')
            for a in range(4):
                for hb in range(2): P(f'buffer_load_dwordx4 {q(PL + (a*2+hb)*4)}, {vL16}, {SWS}, {sT3} offen offset:{hb*1024} sc1')
                if a < 3: P(f's_add_u32 {sT3}, {sT3}, 4096')
            P(f'v_and_b32 {vT[0]}, 6, {vL}\nv_lshlrev_b32 {vT[0]}, 7, {vT[0]}\nv_and_b32 {vT[1]}, 1, {vL}\nv_lshl_add_u32 {vT[0]}, {vT[1]}, 6, {vT[0]}\n'
              f'v_and_b32 {vT[1]}, 48, {vL}\nv_add_u32 {vT[0]}, {vT[0]}, {vT[1]}')
            P(f'buffer_load_dwordx4 {q(PL+32)}, {vT[0]}, {SWS}, {sT2} offen sc1')
            tp = P.vtok()
            P(f's_add_u32 {sT3}, {sIS2}, {G_E*256}\nbuffer_load_dword {vT[11]}, {vFP}, {SWS}, {sT3} offen sc1')
            st['fe'] = P.vtok()
            P(f's_lshl_b32 {sT2}, {sW}, 10\ns_add_u32 {sT2}, {sT2}, {SCR}\nv_add_u32 {vT[0]}, {sT2}, {vL16}')
            P(f's_lshl_b32 {sT2}, {sCH}, 12\ns_add_u32 {sT2}, {sT2}, {SCR}\nv_add_u32 {vT[1]}, {sT2}, {vL16}\nv_and_b32 {vT[2]}, 48, {vL}\nv_lshl_add_u32 {vT[2]}, {vT[2]}, 4, {sT2}')
            P.wait(v=tp)
            for hb in range(2):
                for k in range(4):
                    r = PL + hb*4 + k
                    P(f'v_add_f32 v{r}, v{r}, v{r+8}\nv_add_f32 v{r+16}, v{r+16}, v{r+24}')
            for r in range(PL, PL+8): P(f'v_add_f32 v{r}, v{r}, v{r+16}')
            for sh in (2, 4):
                for k in range(4): P(f'v_add_f32_dpp v{PL+32+k}, v{PL+32+k}, v{PL+32+k} row_ror:{sh} row_mask:0xf bank_mask:0xf')
            P(f'ds_write_b128 {vT[0]}, {q(PL)}\nds_write_b128 {vT[0]}, {q(PL+4)} offset:8192\nds_write_b128 {vT[0]}, {q(PL+32)} offset:16384')
            P.wait(l=P.ltok())
            P('s_barrier')
            RD = 128
            for kind in range(4):
                for r in range(4):
                    if kind < 2: P(f'ds_read_b128 {q(RD + (kind*4+r)*4)}, {vT[1]} offset:{kind*8192 + r*1024}')
                    else: P(f'ds_read_b128 {q(RD + (kind*4+r)*4)}, {vT[2]} offset:{16384 + r*1024 + (kind-2)*16}')
                st['k%d' % kind] = P.ltok()
            KK, ZZ = ACCA, ACCA + 6
            P(f'v_mov_b32 v{KK+2}, 0\nv_mov_b32 v{KK+3}, 0\nv_mov_b32 v{ZZ+2}, 0\nv_mov_b32 v{ZZ+3}, 0')
            for kind in range(4):
                P.wait(l=st['k%d' % kind])
                b0 = RD + kind*16
                for k in range(4): P(f'v_add_f32 v{b0+k}, v{b0+k}, v{b0+4+k}\nv_add_f32 v{b0+8+k}, v{b0+8+k}, v{b0+12+k}')
                for k in range(4): P(f'v_add_f32 v{b0+k}, v{b0+k}, v{b0+8+k}')
                dst = (KK if kind < 2 else ZZ) + (kind & 1)*4
                P(f'v_cvt_pk_bf16_f32 v{dst}, v{b0}, v{b0+1}\nv_cvt_pk_bf16_f32 v{dst+1}, v{b0+2}, v{b0+3}')
            NUM, DEN = ACCB, ACCA + 16
            for hb in range(2):
                for tt in range(2):
                    P(mfma(DEN + (hb*2+tt)*4, ZZ + 2*hb, PQ + tt*4, q(EPS)))
            for hb in range(2):
                for tt in range(2):
                    P(mfma(NUM + (hb*2+tt)*4, KK + 2*hb, PQ + tt*4, '0'))
            for j in range(4): P(f'v_rcp_f32 v{DEN+4*j}, v{DEN+4*j}')
            P(f's_lshl_b32 {sT2}, {sU}, 1\ns_add_u32 {sT2}, {sT2}, {sCH}\ns_lshl_b32 {sT2}, {sT2}, 10\ns_add_u32 {sT2}, {sT2}, {sA2S}')
            for j in range(4):
                for k in range(4): P(f'v_mul_f32 v{NUM+4*j+k}, v{NUM+4*j+k}, v{DEN+4*j}')
            for hb in range(2):
                for x in self.h_epi(NUM + hb*8, NUM + hb*8 + 4, sT2, hb*512, relu=False): P(x)
            st['pub'] = P.vtok()
            pub_group = G_O
        self.stamp(P, 4)
        state['regs'] = vBR
        atok = {}
        def a2load(t):
            if t >= 18: return []
            b = AF + (t % NAF)*8
            return [f's_lshl_b32 {sT2}, s{sSTEP+t}, 10', f's_add_u32 {sT2}, {sT2}, {sA2L}',
                    f'buffer_load_dwordx4 {q(b)}, {vL16}, {SWS}, {sT2} offen sc1', f's_add_u32 {sT2}, {sT2}, {TILE}',
                    f'buffer_load_dwordx4 {q(b+4)}, {vL16}, {SWS}, {sT2} offen sc1', lambda: atok.__setitem__(t, P.vtok())]
        self.check(P, st['fe'], vT[11], vFP, f's_add_u32 {sT3}, {sIS2}, {G_E*256}')
        for t in range(D):
            for x in a2load(t): emit(P, x)
        self.stamp(P, 5)
        ks = []
        GV = vT[0:4]
        for t in range(18):
            n = t // 2; gi = nS0 + n; base = ((gi % 4) & 1) * 32768; wf = WF[t & 1]
            rd = []; mf = []
            for b in range(4):
                for h in range(2):
                    rd.append(f'ds_read_b64_tr_b16 {q(wf + b*4 + 2*h, 2)}, {vBR[b]} offset:{base + h*16384 + (t&1)*2048}')
            accb = ACCH if t < 14 else ACCO
            mf.append((lambda t=t: P.wait(v=atok[t])))
            for b in range(4):
                for tt in range(2):
                    acc = accb + (tt*4+b)*4
                    mf.append(mfma(acc, wf + b*4, AF + (t % NAF)*8 + tt*4, q(acc) if t not in (0, 14) else '0'))
            k = {'reads': rd, 'mfmas': mf, 'fill': []}
            if (t & 1) == 0:
                if n == 1:
                    k['start'] = start(gi, extra_v=lambda: st['pub'],
                                       post=lambda: self.flag_store(P, f's_lshl_b32 {sT3}, {sI}, 8\ns_add_u32 {sT3}, {sT3}, {pub_group*256}', sFL))
                elif n == 0 and T == 2:
                    f0 = start(gi)
                    k['start'] = (lambda f0=f0: (f0(), [])[1])
                else: k['start'] = start(gi)
            tl = t - 1 + D
            if t >= 1:
                if tl == 8: k['fill'] += [lambda: self.check(P, st['fl'], vT[11], vFP, f's_add_u32 {sT3}, {sIS2}, {G_L*256}')]
                if tl == 14: k['fill'] += [lambda: self.check(P, st['fo'], vT[11], vFP, f's_add_u32 {sT3}, {sIS2}, {G_O*256}')]
                k['fill'] += a2load(tl)
                if tl == 6: k['fill'] += [f's_add_u32 {sT3}, {sIS2}, {G_L*256}', f'buffer_load_dword {vT[11]}, {vFP}, {SWS}, {sT3} offen sc1', lambda: st.__setitem__('fl', P.vtok())]
                if tl == 12: k['fill'] += [f's_add_u32 {sT3}, {sIS2}, {G_O*256}', f'buffer_load_dword {vT[11]}, {vFP}, {SWS}, {sT3} offen sc1', lambda: st.__setitem__('fo', P.vtok())]
            if t == 14:
                k['fill'] += [f'v_and_b32 {GV[2]}, 15, {vL}', f'v_lshlrev_b32 {GV[2]}, 2, {GV[2]}', f's_lshl_b32 {sT2}, {sI2}, 1', f's_add_u32 {sT2}, {sT2}, {sCH}',
                              f's_lshl_b32 {sT2}, {sT2}, 7', f's_add_u32 {sT2}, {sT2}, {GATE}',
                              f'buffer_load_dword {GV[0]}, {GV[2]}, {SWS}, {sT2} offen sc1', f'buffer_load_dword {GV[1]}, {GV[2]}, {SWS}, {sT2} offen offset:64 sc1',
                              lambda: st.__setitem__('g', P.vtok())]
            if t == 17:
                k['fill'] += [lambda: P.wait(v=st['g']), f'v_sub_f32 {GV[2]}, 1.0, {GV[0]}', f'v_sub_f32 {GV[3]}, 1.0, {GV[1]}']
                k['fill'] += [f'v_mul_f32 v{ACCH+r}, v{ACCH+r}, {GV[2 + r//16]}' for r in range(16)]
            ks.append(k)
        self.run_ksteps(P, ks)
        fin = [f'v_mul_f32 v{ACCH+r}, v{ACCH+r}, {GV[2 + r//16]}' for r in range(16, 32)]
        fin += [f'v_and_b32 {vT[4]}, 15, {vL}', f'v_mul_u32_u24 {vT[4]}, 272, {vT[4]}', f'v_and_b32 {vT[5]}, 48, {vL}', f'v_add_u32 {vT[4]}, {vT[4]}, {vT[5]}',
                f's_mul_i32 {sT2}, {sRG}, 17408', f's_mul_i32 {sT3}, {sCH}, {32*272}', f's_add_u32 {sT2}, {sT2}, {sT3}', f'v_add_u32 {vT[4]}, {sT2}, {vT[4]}']
        P.wait(l=P.ltok())
        P('s_barrier')
        self.flush(P, fin)
        self.stamp(P, 6)
        for tt in range(2):
            for b in range(4):
                a = (tt*4+b)*4
                for k in range(4): P(f'v_fmac_f32 v{ACCH+a+k}, v{ACCO+a+k}, {GV[tt]}')
                P(f'ds_write_b128 {vT[4]}, {q(ACCH+a)} offset:{tt*16*272 + b*64}')
        P(f'v_lshrrev_b32 {vT[5]}, 3, {vL}\ns_lshl_b32 {sT2}, {sW}, 3\nv_add_u32 {vT[5]}, {sT2}, {vT[5]}\nv_and_b32 {vT[6]}, 7, {vL}')
        P(f'v_mul_u32_u24 {vT[7]}, 272, {vT[5]}\nv_lshl_add_u32 {vT[7]}, {vT[6]}, 5, {vT[7]}')
        P(f'v_lshlrev_b32 {vT[5]}, 10, {vT[5]}\nv_lshl_add_u32 {vT[5]}, {vT[6]}, 4, {vT[5]}')
        P(f's_lshl_b32 {sT2}, {sI2}, 16\ns_lshl_b32 {sT3}, {sJ2}, 7\ns_add_u32 {sT2}, {sT2}, {sT3}')
        P.wait(l=P.ltok())
        P('s_barrier')
        for kg in range(4):
            for hf in range(2): P(f'ds_read_b128 {q(AF + kg*8 + hf*4)}, {vT[7]} offset:{kg*17408 + hf*16}')
        P.wait(l=P.ltok() - 4)
        for k in range(8): P(f'v_add_f32 v{AF+k}, v{AF+k}, v{AF+8+k}')
        P.wait(l=P.ltok())
        for k in range(8): P(f'v_add_f32 v{AF+16+k}, v{AF+16+k}, v{AF+24+k}')
        for k in range(8): P(f'v_add_f32 v{AF+k}, v{AF+k}, v{AF+16+k}')
        for k in range(4): P(f'v_cvt_pk_bf16_f32 v{AF+k}, v{AF+2*k}, v{AF+2*k+1}')
        P(f'buffer_store_dwordx4 {q(AF)}, {vT[5]}, {SOUT}, {sT2} offen')
        self.stamp(P, 7)
        P('s_endpgm')
        return P

    def build(self):
        hdr = open('gated_mix__linear_attn_block__dense_activation_relu__prompt.s.ref').read().split('\n')
        head = [l for l in hdr if l.startswith(';') and '@launch' not in l and not l.startswith('; Override') and not l.startswith('; grid=')]
        head = head[:11]
        P0 = Prog()
        self.prologue(P0)
        P0(f's_and_b32 {sT0}, {sJJ}, 1\ns_lshr_b32 {sT1}, {sJJ}, 1\ns_cmp_eq_u32 {sT0}, {sT1}\ns_cbranch_scc1 LT2')
        P1 = self.body(1)
        P2 = self.body(2)
        allp = Prog()
        allp.lines = P0.lines + P1.lines + ['LT2:'] + P2.lines + ['Lend:', 's_endpgm']
        out = head + ['; @launch grid=(256,1,1) block=(512,1,1) lds=163840',
                      '.amdgcn_target "amdgcn-amd-amdhsa--gfx950"', '.text', f'.globl {NAME}', '.p2align 8',
                      f'.type {NAME},@function', f'{NAME}:', allp.text(),
                      '.section .rodata,"a"', '.p2align 6', f'.amdhsa_kernel {NAME}',
                      '  .amdhsa_next_free_vgpr 256', '  .amdhsa_next_free_sgpr 102', '  .amdhsa_accum_offset 256',
                      '  .amdhsa_group_segment_fixed_size 0', '  .amdhsa_kernarg_size 80', '  .amdhsa_user_sgpr_count 2',
                      '  .amdhsa_user_sgpr_kernarg_segment_ptr 1', '  .amdhsa_system_sgpr_workgroup_id_x 1', '.end_amdhsa_kernel', '']
        return '\n'.join(out)

if __name__ == '__main__':
    import argparse
    ap = argparse.ArgumentParser()
    ap.add_argument('-o', default='gated_mix__linear_attn_block__dense_activation_relu__prompt.s')
    ap.add_argument('--stamps', action='store_true')
    ap.add_argument('-D', type=int, default=4)
    a = ap.parse_args()
    open(a.o, 'w').write(Gen(D=a.D, stamps=a.stamps).build())
```
